```python
import torch

def _softmax(x, axis=-1):
    return torch.softmax(x, dim=axis)
def _gelu(x):
    return torch.nn.functional.gelu(x, approximate="tanh")
def _silu(x):
    return torch.nn.functional.silu(x)
def _sigmoid(x):
    return torch.sigmoid(x)
def _layernorm(x, axis=-1, eps=1e-5):
    m = x.mean(dim=axis, keepdim=True)
    v = x.var(dim=axis, keepdim=True, unbiased=False)
    return (x - m) / torch.sqrt(v + eps)
def _scatter_add(tgt, idx, src, axis=0):
    return tgt.clone().index_add_(axis, idx, src)
def _segment_sum(src, seg, n):
    out = torch.zeros((n,) + src.shape[1:], dtype=src.dtype)
    return out.index_add_(0, seg, src)
def _pad(x, pw):
    flat = tuple(v for pair in reversed(pw) for v in pair)
    return torch.nn.functional.pad(x, flat)

kernel_name = 'recurrent_scan__gqa_block_cached__geglu_ffn__decode'

def setup_inputs():

    _w = (lambda a: (lambda t: t.to(torch.bfloat16) if t.is_floating_point() else t)(torch.as_tensor(a)))
    def _A_setup():
        B, Sq, D = 1, 1, 576
        Hq, Hkv, Sk, Dh = 32, 16, 65536, 128
        assert Hq % Hkv == 0, (Hq, Hkv)
        return {
            "x": _w((lambda *s: torch.randn(*s, dtype=torch.bfloat16) * 0.05)(B, Sq, D)),
            "k_cache": _w((lambda *s: torch.randn(*s, dtype=torch.bfloat16) * 1.6)(B, Hkv, Sk, Dh)),
            "v_cache": _w((lambda *s: torch.randn(*s, dtype=torch.bfloat16) * 0.2)(B, Hkv, Sk, Dh)),
            "wq": _w((lambda *s: torch.randn(*s, dtype=torch.bfloat16) * 1.6)(D, Hq * Dh) * (D ** -0.5)),
            "wo": _w((lambda *s: torch.randn(*s, dtype=torch.bfloat16) * 0.2)(Hq * Dh, D) * ((Hq * Dh) ** -0.5)),
        }
    _A_in = _A_setup()

    def _B_setup():
        B, S, D, F = 1, 1, 576, 4608
        return {
            "x": _w((lambda *s: torch.randn(*s, dtype=torch.bfloat16) * 0.05)(B, S, D)),
            "w_gate": _w((lambda *s: torch.randn(*s, dtype=torch.bfloat16) * 0.1)(D, F)),
            "w_up": _w((lambda *s: torch.randn(*s, dtype=torch.bfloat16) * 0.1)(D, F)),
            "w_down": _w((lambda *s: torch.randn(*s, dtype=torch.bfloat16) * 0.1)(F, D)),
        }
    _B_in = _B_setup()

    return {
        "A_x": _A_in["x"],
        "A_k_cache": _A_in["k_cache"],
        "A_v_cache": _A_in["v_cache"],
        "A_wq": _A_in["wq"],
        "A_wo": _A_in["wo"],
        "B_x": _B_in["x"],
        "B_w_gate": _B_in["w_gate"],
        "B_w_up": _B_in["w_up"],
        "B_w_down": _B_in["w_down"],
    }

def reference(A_x, A_k_cache, A_v_cache, A_wq, A_wo, B_x, B_w_gate, B_w_up, B_w_down):
    def _A_ref(x, k_cache, v_cache, wq, wo):
        B, Sq, D = x.shape
        Hq, Dh = 32, 128
        Hkv = k_cache.shape[1]
        rep = Hq // Hkv
        q = (lambda x, *d: x.permute(*d))((x @ wq).reshape(B, Sq, Hq, Dh), 0, 2, 1, 3)
        k = (lambda x, n, axis: torch.repeat_interleave(x, n, dim=axis))(k_cache, rep, axis=1)
        v = (lambda x, n, axis: torch.repeat_interleave(x, n, dim=axis))(v_cache, rep, axis=1)
        scores = torch.einsum("bhqd,bhkd->bhqk", q, k) * (Dh ** -0.5)
        p = _softmax(scores, axis=-1)
        o = torch.einsum("bhqk,bhkd->bhqd", p, v)
        return (lambda x, *d: x.permute(*d))(o, 0, 2, 1, 3).reshape(B, Sq, Hq * Dh) @ wo

    def _B_ref(x, w_gate, w_up, w_down):
        return (_gelu(x @ w_gate) * (x @ w_up)) @ w_down

    x = A_x
    xn = _layernorm(x, axis=-1)
    s = _A_ref(xn, A_k_cache, A_v_cache, A_wq, A_wo)
    g = _silu(_B_ref(xn, B_w_gate, B_w_up, B_w_down))
    return x + s * g
```

```python
import sys

KNAME = "recurrent_scan__gqa_block_cached__geglu_ffn__decode_kernel"
PNAME = "pre_kernel"

HEADER = """; Kernarg layout for this problem (96 bytes, ptrs only, base s[0:1]):
"""

L_SBUF = 0x0000
L_WML = 0x8000
L_ML = 0x8100
L_CBUF = 0x8200
L_OBF = 0xC200
L_TOTAL = 0x15000
P_XB = 0x0
P_GU = 0x500
P_FB = 0x600
P_TOTAL = 0x15000

W_REC = 0x0
W_SP = 0x100000
W_Q = 0x140000
W_PF = 0x150000
W_CNT = 0x180000
W_FP = 0x200000
W_SC = 0x280000
W_SIZE = 0x800000
W_STAMP = 0x800000

SPIN_MAX = 1 << 16


class G:
    def __init__(self):
        self.o = []
    def __call__(self, s):
        self.o.append("  " + s)
    def label(self, s):
        self.o.append(s + ":")
    def text(self):
        return "\n".join(self.o) + "\n"


def vr(a, n=4):
    return f"v[{a}:{a+n-1}]"


def gen(kvflags="nt", wflags="nt", woflags="nt", xflags="", stamps=0, sleep_poll=4, NS=24, rotmul=0, pool=True, wodelay=0):
    g = G()
    A = g
    NT = 32
    NP = NT - NS
    npool = 64 * NP
    SCB = 4 * NP * 256
    DPPF = "row_mask:0xf bank_mask:0xf"
    cur = [0]

    def stamp(idx):
        if stamps == cur[0]:
            A(f"s_memrealtime s[{80+2*idx}:{81+2*idx}]")

    def stamp_init():
        if stamps == cur[0]:
            A("s_memrealtime s[96:97]")
            for i in range(8):
                A(f"s_mov_b32 s{80+2*i}, 0")

    def stamp_dump():
        if stamps == cur[0]:
            A("s_mov_b64 exec, -1")
            A("s_waitcnt lgkmcnt(0)")
            srd(40, 26, W_STAMP + 0x20000)
            for i in range(8):
                A(f"v_mov_b32 v{16+i}, s{80+2*i}")
            A("v_mov_b32 v24, s96")
            A("s_lshl_b32 s31, s2, 9")
            A("s_lshl_b32 s30, s28, 6")
            A("s_add_u32 s31, s31, s30")
            A(f"s_add_u32 s31, s31, {W_STAMP}")
            A("v_mov_b32 v10, s31")
            A("buffer_store_dwordx4 v[16:19], v10, s[40:43], 0 offen")
            A("buffer_store_dwordx4 v[20:23], v10, s[40:43], 0 offen offset:16")
            A("buffer_store_dword v24, v10, s[40:43], 0 offen offset:32")

    def srd(d, src, size):
        A(f"s_mov_b32 s{d}, s{src}"); A(f"s_mov_b32 s{d+1}, s{src+1}")
        A(f"s_mov_b32 s{d+2}, {size}"); A(f"s_mov_b32 s{d+3}, 0x00020000")

    def bf16r(dst, src):
        A(f"v_cvt_pk_bf16_f32 v{dst}, v{src}, v{src}")
        A(f"v_lshlrev_b32 v{dst}, 16, v{dst}")

    def xreduce(op, r, t, first):
        for c in first:
            A("s_nop 1")
            A(f"{op}_dpp v{r}, v{r}, v{r} {c} {DPPF}")
        A("s_nop 0")
        A(f"v_mov_b32 v{t}, v{r}")
        A("s_nop 1")
        A(f"v_permlane16_swap_b32 v{r}, v{t}")
        A("s_nop 1")
        A(f"{op} v{r}, v{r}, v{t}")
        A(f"v_mov_b32 v{t}, v{r}")
        A("s_nop 1")
        A(f"v_permlane32_swap_b32 v{r}, v{t}")
        A("s_nop 1")
        A(f"{op} v{r}, v{r}, v{t}")
    PAR = ["quad_perm:[2,3,0,1]", "row_ror:4", "row_ror:8"]
    ALL = ["quad_perm:[1,0,3,2]"] + PAR

    g.o.append(HEADER.rstrip("\n"))
    g.o.append(f"; @launch kernel={PNAME} grid=(256,1,1) block=(512,1,1) lds={P_TOTAL}")
    g.o.append(f"; @launch kernel={KNAME} grid=(256,1,1) block=(512,1,1) lds={L_TOTAL}")
    g.o.append('.amdgcn_target "amdgcn-amd-amdhsa--gfx950"')
    g.o.append(".text")

    cur[0] = 1
    g.o.append(f".globl {PNAME}")
    g.o.append(".p2align 8")
    g.o.append(f".type {PNAME},@function")
    g.label(PNAME)
    A("s_cmp_ge_u32 s2, 256")
    A("s_cbranch_scc1 P_end2")
    stamp_init()
    A("s_load_dwordx16 s[4:19], s[0:1], 0")
    A("s_load_dwordx8 s[20:27], s[0:1], 64")
    A("v_lshrrev_b32 v2, 6, v0")
    A("v_and_b32 v1, 63, v0")
    A("v_readfirstlane_b32 s28, v2")
    A("v_lshlrev_b32 v5, 4, v1")
    A("v_lshlrev_b32 v6, 2, v1")
    A("v_lshlrev_b32 v7, 2, v0")
    A("v_mov_b32 v16, 0")
    A(f"ds_write_b32 v7, v16 offset:{P_GU}")
    A(f"ds_write_b32 v7, v16 offset:{P_GU+2048}")
    A("s_cmp_ge_u32 s2, 208")
    A("s_cbranch_scc1 P_init_only")
    A("s_cmp_ge_u32 s2, 144")
    A("s_cbranch_scc1 P_qsetup")
    A("s_and_b32 s64, s2, 7")
    A("s_lshl_b32 s64, s64, 1")
    A("s_bfe_u32 s31, s2, 0x10003")
    A("s_add_u32 s64, s64, s31")
    A("s_and_b32 s31, s2, 0xf0")
    A("s_add_u32 s64, s64, s31")
    A("v_lshrrev_b32 v13, 2, v1")
    A("v_and_b32 v14, 3, v1")
    A("s_movk_i32 s31, 9216")
    A("v_mul_lo_u32 v4, v13, s31")
    A("v_lshl_add_u32 v4, v14, 4, v4")
    A("s_and_b32 s59, s28, 3")
    A(f"s_mul_i32 s65, s59, {144*9216}")
    A("s_lshl_b32 s31, s64, 6")
    A("s_add_u32 s65, s65, s31")
    A(f"s_mov_b32 s66, {16*9216}")
    A("s_mul_i32 s67, s59, 288")
    A("s_mov_b32 s68, 32")
    A("s_lshr_b32 s31, s28, 2")
    A("s_lshl_b32 s69, s31, 7")
    A("s_waitcnt lgkmcnt(0)")
    A("s_cmp_eq_u32 s31, 0")
    A("s_cselect_b32 s36, s16, s18")
    A("s_cselect_b32 s37, s17, s19")
    A(f"s_mov_b32 s38, {576*4608*2}")
    A("s_mov_b32 s39, 0x00020000")
    A("s_branch P_common")
    g.label("P_qsetup")
    A("s_sub_u32 s64, s2, 144")
    A("v_lshrrev_b32 v13, 3, v1")
    A("v_and_b32 v14, 7, v1")
    A("v_lshlrev_b32 v4, 13, v13")
    A("v_lshl_add_u32 v4, v14, 4, v4")
    A(f"s_mul_i32 s65, s28, {72*8192}")
    A("s_lshl_b32 s31, s64, 7")
    A("s_add_u32 s65, s65, s31")
    A(f"s_mov_b32 s66, {8*8192}")
    A("s_mul_i32 s67, s28, 144")
    A("s_mov_b32 s68, 16")
    A("s_mov_b32 s69, 0")
    A("s_waitcnt lgkmcnt(0)")
    srd(36, 10, 576*4096*2)
    g.label("P_common")
    DB = 64
    srd(32, 4, 1152)
    A(f"buffer_load_dwordx4 v[8:11], v5, s[32:35], 0 offen {xflags}")
    A(f"buffer_load_dword v12, v6, s[32:35], 0 offen offset:1024 {xflags}")
    for t in range(9):
        A(f"buffer_load_dwordx4 {vr(DB+4*t)}, v4, s[36:39], s65 offen {wflags}")
        A("s_add_u32 s65, s65, s66")
    DW = 104
    A("s_mov_b32 s48, s20"); A("s_mov_b32 s49, s21")
    A("s_cmp_lt_u32 s2, 144")
    A(f"s_cselect_b32 s50, {576*4608*2}, 0")
    A("s_mov_b32 s51, 0x00020000")
    A("s_lshl_b32 s70, s64, 5")
    A("s_lshl_b32 s31, s28, 2")
    A("s_add_u32 s70, s70, s31")
    A("s_mul_i32 s70, s70, 1152")
    for r in range(4):
        off = r * 1152
        A(f"buffer_load_dwordx4 {vr(DW+4*r)}, v5, s[48:51], s70 offen offset:{off} {wflags}")
    A("v_lshrrev_b32 v17, 3, v1")
    A("v_and_b32 v18, 7, v1")
    A("v_mul_u32_u24 v3, 1152, v17")
    A("v_lshl_add_u32 v3, v18, 4, v3")
    A("s_mov_b32 exec_hi, 0")
    A(f"buffer_load_dwordx4 {vr(DW+16)}, v3, s[48:51], s70 offen offset:1024 {wflags}")
    A("s_mov_b64 exec, -1")
    A("v_lshlrev_b32 v2, 5, v18")
    A("v_lshlrev_b32 v3, 2, v17")
    A("s_barrier")
    A("s_waitcnt vmcnt(14)")
    stamp(0)
    X = 16
    for k in range(5):
        A(f"v_lshlrev_b32 v{X+2*k}, 16, v{8+k}")
        A(f"v_and_b32 v{X+2*k+1}, 0xffff0000, v{8+k}")
    A(f"v_add_f32 v26, v{X}, v{X+1}")
    for k in range(2, 10):
        A(f"v_add_f32 v26, v26, v{X+k}")
    xreduce("v_add_f32", 26, 27, ALL)
    A("s_mov_b32 s31, 0x3ae38e39")
    A("v_mul_f32 v26, s31, v26")
    A(f"v_sub_f32 v28, v{X}, v26")
    A("v_mul_f32 v27, v28, v28")
    for k in range(1, 8):
        A(f"v_sub_f32 v28, v{X+k}, v26")
        A("v_fmac_f32 v27, v28, v28")
    A("s_mov_b32 exec_hi, 0")
    for k in range(8, 10):
        A(f"v_sub_f32 v28, v{X+k}, v26")
        A("v_fmac_f32 v27, v28, v28")
    A("s_mov_b64 exec, -1")
    xreduce("v_add_f32", 27, 28, ALL)
    A("v_mul_f32 v27, s31, v27")
    bf16r(27, 27)
    A("v_add_f32 v27, 0x3727c5ac, v27")
    bf16r(27, 27)
    A("v_sqrt_f32 v27, v27")
    bf16r(26, 26)
    bf16r(27, 27)
    A("v_rcp_f32 v28, v27")
    for k in range(10):
        A(f"v_sub_f32 v{X+k}, v{X+k}, v26")
    for k in range(5):
        A(f"v_cvt_pk_bf16_f32 v{8+k}, v{X+2*k}, v{X+2*k+1}")
    for k in range(5):
        A(f"v_lshlrev_b32 v{X+2*k}, 16, v{8+k}")
        A(f"v_and_b32 v{X+2*k+1}, 0xffff0000, v{8+k}")
    for k in range(10):
        A(f"v_mul_f32 v29, v{X+k}, v28")
        A(f"v_fma_f32 v30, -v29, v27, v{X+k}")
        A(f"v_fma_f32 v{X+k}, v30, v28, v29")
    for k in range(5):
        A(f"v_cvt_pk_bf16_f32 v{8+k}, v{X+2*k}, v{X+2*k+1}")
    A(f"ds_write_b128 v5, v[8:11] offset:{P_XB}")
    A(f"ds_write_b32 v6, v12 offset:{P_XB+1024}")
    A("v_lshlrev_b32 v15, 1, v13")
    A("v_add_u32 v15, s67, v15")
    for t in range(9):
        A(f"ds_read_u16 v{32+t}, v15 offset:{P_XB}")
        A("v_add_u32 v15, s68, v15")
    stamp(1)
    A("s_waitcnt lgkmcnt(0)")
    GA = 16
    for t in range(9):
        A(f"s_waitcnt vmcnt({13-t})")
        A(f"v_lshlrev_b32 v{44+(t&1)}, 16, v{32+t}")
        for w in range(4):
            c0 = '0' if t == 0 else f"v{GA+2*w}"
            c1 = '0' if t == 0 else f"v{GA+2*w+1}"
            A(f"v_dot2_f32_bf16 v{GA+2*w}, v{DB+4*t+w}, v{32+t}, {c0}")
            A(f"v_dot2_f32_bf16 v{GA+2*w+1}, v{DB+4*t+w}, v{44+(t&1)}, {c1}")
    stamp(2)
    A("v_lshlrev_b32 v15, 5, v14")
    A("v_add_u32 v15, s69, v15")
    A("v_lshrrev_b32 v24, 5, v1")
    A("v_lshl_add_u32 v15, v24, 4, v15")
    for e in range(4):
        A(f"v_permlane32_swap_b32 v{GA+e}, v{GA+4+e}")
    A("s_nop 1")
    for e in range(4):
        A(f"v_add_f32 v{GA+e}, v{GA+e}, v{GA+4+e}")
    for e in range(4):
        A(f"ds_add_f32 v15, v{GA+e} offset:{P_GU + e*4}")
    srd(44, 26, W_SIZE)
    A("s_waitcnt lgkmcnt(0)")
    A("s_barrier")
    stamp(3)
    A("s_cmp_ge_u32 s2, 144")
    A("s_cbranch_scc1 P_qfin")
    A("v_and_b32 v18, 31, v1")
    A("v_lshlrev_b32 v18, 2, v18")
    A(f"ds_read_b32 v20, v18 offset:{P_GU}")
    A(f"ds_read_b32 v21, v18 offset:{P_GU+128}")
    A("s_lshl_b32 s71, s28, 2")
    A("s_waitcnt lgkmcnt(0)")
    bf16r(20, 20)
    bf16r(21, 21)
    A("v_mul_f32 v22, v20, v20")
    A("v_mul_f32 v22, v22, v20")
    A("v_mov_b32 v23, 0x3d372713")
    A("v_fma_f32 v22, v22, v23, v20")
    A("v_mul_f32 v22, 0xc0135761, v22")
    A("v_exp_f32 v22, v22")
    A("s_nop 0")
    A("v_add_f32 v22, 1.0, v22")
    A("v_rcp_f32 v22, v22")
    A("s_nop 0")
    A("v_mul_f32 v22, v20, v22")
    bf16r(22, 22)
    A("v_mul_f32 v22, v22, v21")
    bf16r(15, 22)
    A("s_lshl_b32 s31, s71, 2")
    A("v_add_u32 v3, s31, v3")
    A("ds_bpermute_b32 v24, v3, v15")
    FA = 32
    for r in range(4):
        A(f"v_readlane_b32 s{72+2*r}, v15, s71")
        A("s_add_u32 s71, s71, 1")
    A("s_nop 0")
    for r in range(4):
        A(f"s_lshr_b32 s{73+2*r}, s{72+2*r}, 16")
    A("s_waitcnt vmcnt(0) lgkmcnt(0)")
    for r in range(4):
        for w in range(4):
            c0 = '0' if r == 0 else f"v{FA+2*w}"
            c1 = '0' if r == 0 else f"v{FA+2*w+1}"
            A(f"v_dot2_f32_bf16 v{FA+2*w}, v{DW+4*r+w}, s{73+2*r}, {c0}")
            A(f"v_dot2_f32_bf16 v{FA+2*w+1}, v{DW+4*r+w}, s{72+2*r}, {c1}")
    A("v_lshrrev_b32 v25, 16, v24")
    for w in range(4):
        A(f"v_dot2_f32_bf16 v{FA+8+2*w}, v{DW+16+w}, v25, 0")
        A(f"v_dot2_f32_bf16 v{FA+8+2*w+1}, v{DW+16+w}, v24, 0")
    for e in range(8):
        A(f"ds_add_f32 v6, v{FA+e} offset:{P_FB + e*256}")
    A("s_mov_b32 exec_hi, 0")
    for e in range(8):
        A(f"ds_add_f32 v2, v{FA+8+e} offset:{P_FB + 2048 + e*4}")
    A("s_mov_b64 exec, -1")
    A("s_waitcnt lgkmcnt(0)")
    A("s_barrier")
    stamp(4)
    A("v_and_b32 v16, 7, v0")
    A("v_lshlrev_b32 v16, 8, v16")
    A("v_lshrrev_b32 v17, 3, v0")
    A("v_lshl_add_u32 v16, v17, 2, v16")
    A(f"ds_read_b32 v18, v16 offset:{P_FB}")
    A(f"ds_read_b32 v19, v6 offset:{P_FB+2048}")
    A("s_mul_i32 s65, s64, 2304")
    A(f"s_add_u32 s65, s65, {W_FP}")
    A("s_waitcnt lgkmcnt(0)")
    A("buffer_store_dword v18, v7, s[44:47], s65 offen")
    A("s_cmp_lg_u32 s28, 0")
    A("s_cbranch_scc1 P_end")
    A("buffer_store_dword v19, v6, s[44:47], s65 offen offset:2048")
    A("s_branch P_end")
    g.label("P_qfin")
    A("s_cmp_lg_u32 s28, 0")
    A("s_cbranch_scc1 P_end")
    A(f"ds_read_b32 v18, v6 offset:{P_GU}")
    A("s_lshl_b32 s65, s64, 7")
    A(f"s_add_u32 s65, s65, {W_Q}")
    A("v_lshlrev_b32 v16, 1, v1")
    A("s_waitcnt lgkmcnt(0)")
    A("v_cvt_pk_bf16_f32 v18, v18, v18")
    A("buffer_store_short v18, v16, s[44:47], s65 offen")
    A("s_branch P_end")
    g.label("P_init_only")
    A("s_sub_u32 s60, s2, 208")
    A("s_lshl_b32 s60, s60, 3")
    A("s_add_u32 s60, s60, s28")
    A("s_waitcnt lgkmcnt(0)")
    A("s_cmp_ge_u32 s60, 256")
    A("s_cbranch_scc1 P_end")
    srd(44, 26, W_SIZE)
    for k in range(4):
        A(f"v_mov_b32 v{20+k}, -1")
    A("v_mov_b32 v24, 0")
    A("s_lshl_b32 s62, s60, 11")
    A("buffer_store_dwordx4 v[20:23], v5, s[44:47], s62 offen")
    A("s_lshl_b32 s63, s60, 8")
    A(f"s_add_u32 s63, s63, {W_SP}")
    A("buffer_store_dword v20, v6, s[44:47], s63 offen")
    A("s_mov_b64 exec, 15")
    A("buffer_store_dword v20, v6, s[44:47], s62 offen offset:1024")
    A("s_lshl_b32 s62, s60, 4")
    A(f"s_add_u32 s62, s62, {W_PF}")
    A("s_lshl_b32 s63, s60, 8")
    A(f"s_add_u32 s63, s63, {W_CNT}")
    A("buffer_store_dword v24, v6, s[44:47], s62 offen")
    A("buffer_store_dword v24, v6, s[44:47], s63 offen")
    g.label("P_end")
    stamp(5)
    stamp_dump()
    g.label("P_end2")
    A("s_endpgm")

    cur[0] = 2
    st2 = (stamps == 2)
    g.o.append(f".globl {KNAME}")
    g.o.append(".p2align 8")
    g.o.append(f".type {KNAME},@function")
    g.label(KNAME)
    A("s_cmp_ge_u32 s2, 256")
    A("s_cbranch_scc1 L_end2")
    stamp_init()
    A("s_load_dwordx16 s[4:19], s[0:1], 0")
    A("s_load_dwordx8 s[20:27], s[0:1], 64")
    A("v_lshrrev_b32 v2, 6, v0")
    A("v_and_b32 v1, 63, v0")
    A("v_readfirstlane_b32 s28, v2")
    A("s_lshr_b32 s29, s2, 4")
    A("s_and_b32 s30, s2, 15")
    A("v_and_b32 v2, 15, v1")
    A("v_lshrrev_b32 v3, 4, v1")
    A("s_mov_b32 s56, 0x3fb8aa3b")
    A("s_cmp_ge_u32 s28, 4")
    A("s_cbranch_scc1 L_side")

    RING = 16
    STG = 48
    ACC = 80
    FR = 48
    DD = 112
    QT = 116
    MSK = 124
    AOP = 112
    A("v_lshrrev_b32 v10, 1, v2")
    A("v_lshlrev_b32 v4, 8, v10")
    A("v_lshl_add_u32 v4, v3, 5, v4")
    A("v_and_b32 v11, 1, v2")
    A("v_lshl_add_u32 v4, v11, 4, v4")
    A("v_add_u32 v5, 0x1000, v4")
    A("v_and_b32 v12, 1, v10")
    A("v_lshlrev_b32 v12, 8, v12")
    A("v_lshl_add_u32 v12, v3, 5, v12")
    A("v_lshl_add_u32 v12, v11, 4, v12")
    A("s_lshl_b32 s60, s29, 24")
    A("s_lshl_b32 s61, s30, 20")
    if rotmul:
        A(f"s_mul_i32 s58, s2, {rotmul}")
        A("s_and_b32 s58, s58, 31")
        A("s_lshl_b32 s58, s58, 15")
        A("s_lshl_b32 s31, s28, 13")
        A("s_add_u32 s58, s58, s31")
    else:
        A("s_lshl_b32 s58, s28, 13")
    A("s_add_u32 s62, s58, s61")
    A("s_lshl_b32 s63, s29, 9")
    A(f"s_add_u32 s63, s63, {W_Q}")
    A("s_waitcnt lgkmcnt(0)")
    srd(44, 26, W_SIZE)
    A("s_add_u32 s32, s6, s60")
    A("s_addc_u32 s33, s7, 0")
    A("s_mov_b32 s34, 0x1000000")
    A("s_mov_b32 s35, 0x00020000")

    q = []

    def adv():
        A("s_add_u32 s58, s58, 0x8000")
        A("s_and_b32 s58, s58, 0xfffff")
        A("s_add_u32 s62, s58, s61")

    def kload(slot_reg, idx):
        R, u = idx >> 1, idx & 1
        off = R * 2048 + u * 128
        vo = "v4" if off < 4096 else "v5"
        A(f"buffer_load_dwordx4 {vr(slot_reg)}, {vo}, s[32:35], s62 offen offset:{off % 4096} {kvflags}")
        q.append(slot_reg)

    def vload(slot_reg, idx):
        A(f"buffer_load_dwordx4 {vr(slot_reg)}, v6, s[36:39], s62 offen offset:{idx*256} {kvflags}")
        q.append(slot_reg)

    def wait_for(x):
        i = q.index(x)
        n = len(q) - 1 - i
        A(f"s_waitcnt vmcnt({n})")
        del q[: i + 1]

    def qcore():
        k = 0
        while k < len(q) and isinstance(q[k], str):
            k += 1
        return list(q[k:])

    A(f"buffer_load_dwordx4 {vr(QT)}, v12, s[44:47], s63 offen")
    A(f"buffer_load_dwordx4 {vr(QT+4)}, v12, s[44:47], s63 offen offset:128")
    q.append('q')
    for idx in range(8):
        kload(RING + 4 * idx, idx)
    adv()
    A("s_add_u32 s36, s8, s60")
    A("s_addc_u32 s37, s9, 0")
    A("s_mov_b32 s38, 0x1000000")
    A("s_mov_b32 s39, 0x00020000")
    A("s_mov_b32 s52, 0x05040100")
    A("s_mov_b32 s53, 0x07060302")
    A("v_lshlrev_b32 v6, 11, v3")
    A("v_lshl_add_u32 v6, v2, 4, v6")
    A("s_lshl_b32 s31, s28, 13")
    A("v_lshlrev_b32 v13, 2, v1")
    A("v_add_u32 v7, s31, v13")
    A("v_mov_b32 v8, 0xff800000")
    A("v_mov_b32 v9, 0")
    A("s_mov_b32 s54, 0xaaaaaaaa")
    A("s_mov_b32 s55, 0xaaaaaaaa")
    A("s_mov_b32 s57, 0x3db504f3")
    A("v_and_b32 v11, 1, v10")
    A("v_lshlrev_b32 v11, 4, v11")
    A("v_mov_b32 v12, 0xffff")
    A("v_lshlrev_b32 v12, v11, v12")
    A("v_lshrrev_b32 v11, 1, v10")
    for v in range(4):
        A(f"v_cmp_eq_u32 vcc, {v}, v11")
        A("s_nop 1")
        A(f"v_cndmask_b32 v{MSK+v}, 0, v12, vcc")
    A("s_mov_b32 s64, 0x000f000f"); A("s_mov_b32 s65, 0x000f000f")
    A("s_mov_b32 s66, 0x00f000f0"); A("s_mov_b32 s67, 0x00f000f0")
    A("s_mov_b32 s68, 0x0f000f00"); A("s_mov_b32 s69, 0x0f000f00")
    A("s_mov_b32 s70, 0xf000f000"); A("s_mov_b32 s71, 0xf000f000")
    A(f"s_lshl_b32 s31, s29, 12")
    A(f"s_add_u32 s31, s31, {W_CNT}")
    A("v_mov_b32 v12, s31")
    stamp(0)
    wait_for('q')
    stamp(1)
    for R in range(4):
        for u in range(2):
            for k in range(4):
                A(f"v_cndmask_b32 v{FR+(R*2+u)*4+k}, 0, v{QT+u*4+k}, s[{64+2*R}:{65+2*R}]")

    def ktile(issue):
        base = RING
        for idx in range(8):
            wait_for(base + 4 * idx)
            A(f"v_mfma_f32_16x16x32_bf16 {vr(DD)}, {vr(FR+idx*4)}, {vr(base+4*idx)}, {'0' if idx == 0 else vr(DD)}")
            if issue == 'K':
                kload(base + 4 * idx, idx)
            else:
                vload(base + 4 * idx, idx)
        adv()
        A("s_nop 4")
        A(f"v_cndmask_b32 v10, v{DD}, v{DD+3}, s[54:55]")
        A(f"v_cndmask_b32 v11, v{DD+2}, v{DD+1}, s[54:55]")
        A("s_nop 1")
        A(f"v_add_f32_dpp v10, v11, v10 quad_perm:[1,0,3,2] {DPPF}")
        A("v_cvt_pk_bf16_f32 v10, v10, v10")
        A("v_lshlrev_b32 v10, 16, v10")
        A("v_mul_f32 v10, s57, v10")
        A("v_cvt_pk_bf16_f32 v10, v10, v10")
        A("v_lshlrev_b32 v10, 16, v10")
        A("v_max_f32 v8, v8, v10")
        A("ds_write_b32 v7, v10")
        A("v_add_u32 v7, 0x100, v7")

    A(f"s_mov_b32 s72, {NT - 1}")
    q0 = qcore()
    g.label("L_kloop")
    ktile('K')
    assert qcore() == q0, (q, q0)
    A("s_sub_u32 s72, s72, 1")
    A("s_cmp_lg_u32 s72, 0")
    A("s_cbranch_scc1 L_kloop")
    ktile('V')
    stamp(3)
    A("v_subrev_u32 v7, 0x2000, v7")
    if pool:
        for k in range(NP):
            A(f"ds_read_b32 v{ACC+k}, v7 offset:{(NS+k)*256}")
            if k % 8 == 7:
                A("s_waitcnt lgkmcnt(0)")
        A(f"s_mul_i32 s63, s2, {SCB}")
        A("s_lshl_b32 s31, s28, 8")
        A("s_add_u32 s63, s63, s31")
        A(f"s_add_u32 s63, s63, {W_SC}")
        A("s_waitcnt lgkmcnt(0)")
        for k in range(NP):
            A(f"buffer_store_dword v{ACC+k}, v13, s[44:47], s63 offen offset:{(k*1024) % 4096} sc1")
            q.append('st')
            if k % 4 == 3 and k + 1 < NP:
                A("s_add_u32 s63, s63, 0x1000")
    A("ds_read_b32 v14, v7")
    xreduce("v_max_f32", 8, 10, PAR)
    for k in range(32):
        A(f"v_mov_b32 v{ACC+k}, 0")

    def pcalc(next_lds):
        A("v_sub_f32 v10, v14, v8")
        if next_lds:
            A("v_add_u32 v7, 0x100, v7")
        A("v_mul_f32 v10, s56, v10")
        if next_lds:
            A("ds_read_b32 v14, v7")
        A("v_exp_f32 v10, v10")
        A("s_nop 0")
        A("v_add_f32 v9, v9, v10")
        A("v_cvt_pk_bf16_f32 v10, v10, v10")
        for v in range(4):
            A(f"v_and_b32 v{AOP+v}, v10, v{MSK+v}")

    def vbody(issue):
        base = RING
        for v in range(4):
            t0, t1 = base + 8 * v, base + 8 * v + 4
            wait_for(t1)
            for w in range(4):
                A(f"v_perm_b32 v{STG+(2*w)*4+v}, v{t1+w}, v{t0+w}, s52")
                A(f"v_perm_b32 v{STG+(2*w+1)*4+v}, v{t1+w}, v{t0+w}, s53")
            if issue:
                vload(t0, 2 * v)
                vload(t1, 2 * v + 1)
        if not issue:
            A("s_nop 1")
        for d in range(8):
            A(f"v_mfma_f32_16x16x32_bf16 {vr(ACC+4*d)}, {vr(AOP)}, {vr(STG+4*d)}, {vr(ACC+4*d)}")

    def claim():
        A("v_mov_b32 v15, 1")
        A("s_mov_b64 exec, 1")
        A("buffer_atomic_add v15, v12, s[44:47], 0 offen sc0 sc1")
        A("s_mov_b64 exec, -1")
        q.append('claim')

    def lfinish():
        xreduce("v_add_f32", 9, 10, PAR)
        A("s_lshl_b32 s31, s28, 4")
        A("v_add_u32 v10, s31, v13")
        A("s_mov_b64 exec, 3")
        A(f"ds_write_b32 v10, v8 offset:{L_WML}")
        A(f"ds_write_b32 v10, v9 offset:{L_WML+8}")
        A("s_mov_b64 exec, -1")

    nstat = NS if pool else NT
    A("s_waitcnt lgkmcnt(0)")
    pcalc(True)
    vbody(True)
    adv()
    nl = nstat - 1 - (2 if pool else 1)
    A(f"s_mov_b32 s72, {nl}")
    if pool:
        A("s_lshl_b32 s63, s2, 4")
        A("s_lshl_b32 s31, s28, 2")
        A("s_add_u32 s63, s63, s31")
        A(f"s_add_u32 s63, s63, {W_PF}")
    q0 = qcore()
    g.label("L_vloop")
    A("s_waitcnt lgkmcnt(0)")
    pcalc(True)
    vbody(True)
    adv()
    assert qcore() == q0, (q, q0)
    if pool:
        A(f"s_cmp_lg_u32 s72, {nl}")
        A("s_cbranch_scc1 L_noflag")
        A("v_mov_b32 v15, 1")
        A("v_mov_b32 v11, 0")
        A("s_mov_b64 exec, 1")
        A("buffer_store_dword v15, v11, s[44:47], s63 offen sc1")
        A("s_mov_b64 exec, -1")
        g.label("L_noflag")
    A("s_sub_u32 s72, s72, 1")
    A("s_cmp_lg_u32 s72, 0")
    A("s_cbranch_scc1 L_vloop")
    if pool:
        A("s_waitcnt lgkmcnt(0)")
        pcalc(True)
        A("s_lshl_b32 s63, s29, 8")
        A(f"s_add_u32 s63, s63, {W_PF}")
        A("buffer_load_dword v11, v13, s[44:47], s63 offen sc1")
        q.append('flags')
        claim()
        vbody(True)
        A("s_waitcnt vmcnt(8) lgkmcnt(0)")
        A("s_mov_b32 s73, 0")
        g.label("L_fchk")
        A("v_cmp_ne_u32 vcc, 1, v11")
        A("s_cbranch_vccz L_pool")
        A(f"s_cmp_ge_u32 s73, {SPIN_MAX}")
        A("s_cbranch_scc1 L_pool")
        A("s_sleep 16")
        A("buffer_load_dword v11, v13, s[44:47], s63 offen sc1")
        A("s_add_u32 s73, s73, 1")
        A("s_waitcnt vmcnt(0)")
        A("s_branch L_fchk")
        g.label("L_pool")
        A("s_waitcnt vmcnt(8)")
        del q[:len(q) - 8]
        q0 = list(q)
        A("v_readfirstlane_b32 s74, v15")
        A("v_cmp_gt_f32 vcc, v14, v8")
        A("s_cbranch_vccnz L_rescale")
        g.label("L_rs_ok")
        A(f"s_cmp_ge_u32 s74, {npool}")
        A("s_cbranch_scc1 L_drain")
        pcalc(False)
        A("s_bfe_u32 s75, s74, 0x40002")
        A("s_lshr_b32 s76, s74, 6")
        A("s_and_b32 s77, s74, 3")
        if rotmul:
            A("s_lshl_b32 s78, s29, 4")
            A("s_add_u32 s78, s78, s75")
            A(f"s_mul_i32 s78, s78, {rotmul}")
            A("s_add_u32 s78, s78, s76")
            A(f"s_add_u32 s78, s78, {NS}")
            A("s_and_b32 s78, s78, 31")
        else:
            A(f"s_add_u32 s78, s76, {NS}")
        A("s_lshl_b32 s78, s78, 15")
        A("s_lshl_b32 s79, s77, 13")
        A("s_add_u32 s78, s78, s79")
        A("s_lshl_b32 s79, s75, 20")
        A("s_add_u32 s62, s78, s79")
        A("s_lshl_b32 s78, s29, 4")
        A("s_add_u32 s78, s78, s75")
        A(f"s_mul_i32 s78, s78, {SCB}")
        A("s_lshl_b32 s79, s76, 2")
        A("s_add_u32 s79, s79, s77")
        A("s_lshl_b32 s79, s79, 8")
        A("s_add_u32 s78, s78, s79")
        A(f"s_add_u32 s63, s78, {W_SC}")
        claim()
        A("buffer_load_dword v14, v13, s[44:47], s63 offen sc1")
        q.append('score')
        vbody(True)
        assert q[-8:] == q0 and q[:-8] == ['claim', 'score'], q
        A("s_branch L_pool")
        g.label("L_rescale")
        A("v_max_f32 v11, v14, v8")
        xreduce("v_max_f32", 11, 10, PAR)
        A("v_sub_f32 v10, v8, v11")
        A("v_mul_f32 v10, s56, v10")
        A("v_exp_f32 v10, v10")
        A("v_mov_b32 v8, v11")
        A("s_nop 0")
        A("v_mul_f32 v9, v9, v10")
        A("v_readlane_b32 s78, v10, 0")
        A("v_readlane_b32 s79, v10, 1")
        A("s_nop 7")
        for d in range(8):
            for r in range(4):
                A(f"v_mul_f32 v{ACC+4*d+r}, s{78 + (r & 1)}, v{ACC+4*d+r}")
        A("s_branch L_rs_ok")
        g.label("L_drain")
        q[:] = list(q0)
    else:
        A("s_waitcnt lgkmcnt(0)")
    pcalc(False)
    lfinish()
    vbody(False)
    assert not q
    T = RING
    A("v_lshrrev_b32 v10, 1, v3")
    A("v_lshlrev_b32 v10, 9, v10")
    A("v_lshl_add_u32 v10, v2, 5, v10")
    A("v_and_b32 v11, 1, v3")
    A("v_lshl_add_u32 v10, v11, 4, v10")
    A("s_lshl_b32 s31, s28, 13")
    A("v_add_u32 v10, s31, v10")
    A("s_nop 1")
    for d in range(8):
        for h in range(2):
            A(f"v_add_f32 v{T+h*8+d}, v{ACC+4*d+h}, v{ACC+4*d+h+2}")
    A("s_nop 0")
    for d in range(8):
        A(f"v_permlane32_swap_b32 v{T+d}, v{T+8+d}")
    A("s_nop 0")
    for d in range(8):
        A(f"v_add_f32 v{T+d}, v{T+d}, v{T+8+d}")
    A("s_nop 0")
    for d in range(4):
        A(f"v_permlane16_swap_b32 v{T+d}, v{T+4+d}")
    A("s_nop 0")
    for d in range(4):
        A(f"v_add_f32 v{T+d}, v{T+d}, v{T+4+d}")
    A(f"ds_write_b128 v10, {vr(T)}")
    A("s_waitcnt lgkmcnt(0)")
    stamp(4)
    A("s_barrier")
    A("s_branch L_tail")

    g.label("L_side")
    WF = 96
    A("s_cmp_lt_u32 s30, 7")
    A("s_cbranch_scc1 L_end")
    A("s_sub_u32 s58, s28, 4")
    A("s_sub_u32 s59, s30, 7")
    A("v_lshlrev_b32 v6, 2, v1")
    A("s_movk_i32 s31, 9216")
    A("v_mul_lo_u32 v4, v3, s31")
    A("v_lshl_add_u32 v4, v2, 1, v4")
    A("v_add_u32 v7, 4608, v4")
    A(f"s_mul_i32 s62, s29, {256*1152}")
    A("s_lshl_b32 s31, s59, 7")
    A("s_add_u32 s62, s62, s31")
    A("s_lshl_b32 s31, s58, 5")
    A("s_add_u32 s62, s62, s31")
    A("s_waitcnt lgkmcnt(0)")
    srd(44, 26, W_SIZE)
    srd(36, 12, 4096*576*2)
    for half in range(2):
        for kk in range(4 * half, 4 * half + 4):
            for e in range(8):
                A(f"buffer_load_ushort v{64+(kk%4)*8+e}, {'v4' if e < 4 else 'v7'}, s[36:39], s62 offen offset:{(e%4)*1152} {woflags}")
            A(f"s_add_u32 s62, s62, {32*1152}")
        A("s_waitcnt vmcnt(0)")
        for kk in range(4 * half, 4 * half + 4):
            for v in range(4):
                A(f"v_lshl_or_b32 v{WF+kk*4+v}, v{64+(kk%4)*8+2*v+1}, 16, v{64+(kk%4)*8+2*v}")
    A("s_cmp_lg_u32 s58, 0")
    A("s_cbranch_scc1 L_s_wait")
    A("s_cmp_lg_u32 s29, s59")
    A("s_cbranch_scc1 L_s_wait")
    srd(32, 4, 1152)
    A("s_lshl_b32 s65, s59, 8")
    A(f"s_add_u32 s65, s65, {W_FP}")
    A("v_mov_b32 v16, 0")
    A("s_mov_b32 s72, 9")
    A("s_lshl_b32 s31, s59, 7")
    A("v_lshlrev_b32 v13, 1, v1")
    A("buffer_load_ushort v15, v13, s[32:35], s31 offen")
    g.label("L_fsum")
    for k in range(16):
        A(f"buffer_load_dword v{32+k}, v6, s[44:47], s65 offen")
        A("s_add_u32 s65, s65, 2304")
    for k in range(16):
        A(f"s_waitcnt vmcnt({15-k})")
        A(f"v_add_f32 v16, v16, v{32+k}")
    A("s_sub_u32 s72, s72, 1")
    A("s_cmp_lg_u32 s72, 0")
    A("s_cbranch_scc1 L_fsum")
    bf16r(16, 16)
    A("v_mul_f32 v17, 0xbfb8aa3b, v16")
    A("v_exp_f32 v17, v17")
    A("s_nop 0")
    A("v_add_f32 v17, 1.0, v17")
    A("v_rcp_f32 v17, v17")
    A("s_nop 0")
    A("v_mul_f32 v16, v16, v17")
    bf16r(14, 16)
    A("v_lshlrev_b32 v15, 16, v15")
    g.label("L_s_wait")
    stamp(4)
    A("s_barrier")

    g.label("L_tail")
    A("v_lshlrev_b32 v5, 4, v1")
    A("s_lshl_b32 s62, s29, 15")
    A("s_cmp_lg_u32 s28, 3")
    A("s_cbranch_scc1 L_poll")
    A("v_lshrrev_b32 v10, 5, v1")
    A("v_lshlrev_b32 v10, 2, v10")
    for w in range(4):
        A(f"ds_read_b128 {vr(16+4*w)}, v5 offset:{w*8192}")
    for w in range(4):
        A(f"ds_read_b32 v{32+2*w}, v10 offset:{L_WML + w*16}")
        A(f"ds_read_b32 v{33+2*w}, v10 offset:{L_WML + w*16 + 8}")
    A("s_lshl_b32 s63, s2, 11")
    A("s_waitcnt lgkmcnt(0)")
    A("v_max_f32 v11, v32, v34")
    A("v_max3_f32 v11, v11, v36, v38")
    for w in range(4):
        A(f"v_sub_f32 v{32+2*w}, v{32+2*w}, v11")
        A(f"v_mul_f32 v{32+2*w}, s56, v{32+2*w}")
        A(f"v_exp_f32 v{32+2*w}, v{32+2*w}")
    A("s_nop 0")
    A("v_mul_f32 v12, v32, v33")
    for w in range(1, 4):
        A(f"v_fmac_f32 v12, v{32+2*w}, v{33+2*w}")
    for k in range(4):
        A(f"v_mul_f32 v{40+k}, v32, v{16+k}")
        for w in range(1, 4):
            A(f"v_fmac_f32 v{40+k}, v{32+2*w}, v{16+4*w+k}")
    for k in range(4):
        A(f"v_min_u32 v{40+k}, 0xfffffffe, v{40+k}")
    A("buffer_store_dwordx4 v[40:43], v5, s[44:47], s63 offen sc1")
    A("v_min_u32 v12, 0xfffffffe, v12")
    A("v_min_u32 v11, 0xfffffffe, v11")
    A("s_mov_b32 exec_lo, 1")
    A("s_mov_b32 exec_hi, 1")
    A("buffer_store_dword v11, v10, s[44:47], s63 offen offset:1024 sc1")
    A("buffer_store_dword v12, v10, s[44:47], s63 offen offset:1032 sc1")
    A("s_mov_b64 exec, -1")
    g.label("L_poll")
    stamp(5)
    A("s_cmp_lt_u32 s30, 7")
    A("s_cbranch_scc1 L_end")
    A("s_lshl_b32 s31, s28, 12")
    A("s_add_u32 s62, s62, s31")
    A("v_mov_b32 v10, 0")
    A("s_mov_b32 s72, 0")
    g.label("L_poll_loop")
    A("buffer_load_dwordx4 v[16:19], v5, s[44:47], s62 offen sc1")
    A("buffer_load_dwordx4 v[20:23], v5, s[44:47], s62 offen offset:2048 sc1")
    A("buffer_load_dwordx4 v[24:27], v10, s[44:47], s62 offen offset:1024 sc1")
    A("buffer_load_dwordx4 v[28:31], v10, s[44:47], s62 offen offset:3072 sc1")
    A("s_add_u32 s72, s72, 1")
    A("s_waitcnt vmcnt(0)")
    A("v_max3_u32 v11, v16, v17, v18")
    A("v_max3_u32 v12, v19, v20, v21")
    A("v_max3_u32 v13, v22, v23, v24")
    A("v_max3_u32 v11, v11, v25, v26")
    A("v_max3_u32 v12, v12, v27, v28")
    A("v_max3_u32 v13, v13, v29, v30")
    A("v_max3_u32 v11, v11, v12, v13")
    A("v_max_u32 v11, v11, v31")
    A("v_cmp_eq_u32 vcc, -1, v11")
    A(f"s_cmp_ge_u32 s72, {SPIN_MAX}")
    A("s_cbranch_scc1 L_poll_done")
    A("s_cbranch_vccz L_poll_done")
    if sleep_poll:
        A(f"s_sleep {sleep_poll}")
    A("s_branch L_poll_loop")
    g.label("L_poll_done")
    A("s_lshl_b32 s31, s28, 11")
    A("v_add_u32 v11, s31, v5")
    A(f"ds_write_b128 v11, v[16:19] offset:{L_CBUF}")
    A(f"ds_write_b128 v11, v[20:23] offset:{L_CBUF+1024}")
    A("s_lshl_b32 s31, s28, 5")
    A("v_mov_b32 v11, s31")
    A("s_mov_b64 exec, 1")
    A(f"ds_write_b128 v11, v[24:27] offset:{L_ML}")
    A(f"ds_write_b128 v11, v[28:31] offset:{L_ML+16}")
    A("s_mov_b64 exec, -1")
    A("s_waitcnt lgkmcnt(0)")
    stamp(6)
    A("s_barrier")
    A("s_cmp_ge_u32 s28, 4")
    A("s_cbranch_scc1 L_tail_s")
    A("s_lshr_b32 s31, s28, 1")
    A("s_lshl_b32 s31, s31, 2")
    A("v_lshlrev_b32 v10, 4, v2")
    A("v_add_u32 v10, s31, v10")
    A(f"ds_read_b32 v12, v10 offset:{L_ML}")
    A(f"ds_read_b32 v13, v10 offset:{L_ML+8}")
    A("v_lshlrev_b32 v11, 2, v0")
    for s in range(16):
        A(f"ds_read_b32 v{16+s}, v11 offset:{L_CBUF + s*1024}")
    A("s_waitcnt lgkmcnt(0)")
    A(f"v_max_f32_dpp v14, v12, v12 row_ror:1 {DPPF}")
    A("s_nop 1")
    A(f"v_max_f32_dpp v14, v14, v14 row_ror:2 {DPPF}")
    A("s_nop 1")
    A(f"v_max_f32_dpp v14, v14, v14 row_ror:4 {DPPF}")
    A("s_nop 1")
    A(f"v_max_f32_dpp v14, v14, v14 row_ror:8 {DPPF}")
    A("v_sub_f32 v12, v12, v14")
    A("v_mul_f32 v12, s56, v12")
    A("v_exp_f32 v12, v12")
    A("s_nop 0")
    A("v_mul_f32 v13, v12, v13")
    A("s_nop 1")
    A(f"v_add_f32_dpp v13, v13, v13 row_ror:1 {DPPF}")
    A("s_nop 1")
    A(f"v_add_f32_dpp v13, v13, v13 row_ror:2 {DPPF}")
    A("s_nop 1")
    A(f"v_add_f32_dpp v13, v13, v13 row_ror:4 {DPPF}")
    A("s_nop 1")
    A(f"v_add_f32_dpp v13, v13, v13 row_ror:8 {DPPF}")
    A("v_rcp_f32 v15, v13")
    for s in range(16):
        if s < 4:
            A(f"v_mul_f32_dpp v{32+s}, v12, v{16+s} row_newbcast:{s} {DPPF}")
        else:
            A(f"v_fmac_f32_dpp v{32+s%4}, v12, v{16+s} row_newbcast:{s} {DPPF}")
    A("v_add_f32 v32, v32, v33")
    A("v_add_f32 v34, v34, v35")
    A("v_add_f32 v14, v32, v34")
    A("v_mul_f32 v16, v14, v15")
    A("v_fma_f32 v17, -v16, v13, v14")
    A("v_fma_f32 v16, v17, v15, v16")
    A("v_cvt_pk_bf16_f32 v16, v16, v16")
    A("v_lshlrev_b32 v11, 1, v0")
    A(f"ds_write_b16 v11, v16 offset:{L_OBF}")
    A("s_waitcnt lgkmcnt(0)")
    A("s_barrier")
    A("s_branch L_end" if st2 else "s_endpgm")

    g.label("L_tail_s")
    A("v_lshlrev_b32 v10, 4, v3")
    A("s_lshl_b32 s63, s59, 4")
    A("s_add_u32 s63, s63, s29")
    A("s_lshl_b32 s63, s63, 8")
    A(f"s_add_u32 s63, s63, {W_SP}")
    A("s_lshl_b32 s31, s58, 6")
    A("s_add_u32 s63, s63, s31")
    A("v_lshlrev_b32 v11, 2, v1")
    if st2:
        A("s_waitcnt lgkmcnt(0)")
    A("s_barrier")
    for kk in range(8):
        A(f"ds_read_b128 {vr(16+4*kk)}, v10 offset:{L_OBF + 64*kk}")
    for kk in range(8):
        A(f"s_waitcnt lgkmcnt({7-kk})")
        A(f"v_mfma_f32_16x16x32_bf16 v[48:51], {vr(16+4*kk)}, {vr(WF+4*kk)}, {'0' if kk == 0 else 'v[48:51]'}")
    A("s_mov_b64 exec, 0xffff")
    A("s_nop 7")
    A("v_min_u32 v48, 0xfffffffe, v48")
    A("buffer_store_dword v48, v11, s[44:47], s63 offen sc1")
    A("s_mov_b64 exec, -1")
    A("s_cmp_lg_u32 s58, 0")
    A("s_cbranch_scc1 L_end")
    A("s_cmp_lg_u32 s29, s59")
    A("s_cbranch_scc1 L_end")
    A("s_lshl_b32 s63, s59, 12")
    A(f"s_add_u32 s63, s63, {W_SP}")
    srd(40, 22, 1152)
    A("s_mov_b32 s72, 0")
    g.label("L_fin_loop")
    for k in range(16):
        A(f"buffer_load_dword v{16+k}, v11, s[44:47], s63 offen offset:{256*k} sc1")
    A("s_add_u32 s72, s72, 1")
    A("s_waitcnt vmcnt(0)")
    A("v_max3_u32 v32, v16, v17, v18")
    A("v_max3_u32 v33, v19, v20, v21")
    A("v_max3_u32 v34, v22, v23, v24")
    A("v_max3_u32 v32, v32, v25, v26")
    A("v_max3_u32 v33, v33, v27, v28")
    A("v_max3_u32 v34, v34, v29, v30")
    A("v_max3_u32 v32, v32, v33, v34")
    A("v_max_u32 v32, v32, v31")
    A("v_cmp_eq_u32 vcc, -1, v32")
    A(f"s_cmp_ge_u32 s72, {SPIN_MAX}")
    A("s_cbranch_scc1 L_fin_done")
    A("s_cbranch_vccz L_fin_done")
    A("s_sleep 1")
    A("s_branch L_fin_loop")
    g.label("L_fin_done")
    for k in range(8):
        A(f"v_add_f32 v{16+k}, v{16+k}, v{24+k}")
    for k in range(4):
        A(f"v_add_f32 v{16+k}, v{16+k}, v{20+k}")
    A("v_add_f32 v16, v16, v18")
    A("v_add_f32 v17, v17, v19")
    A("v_add_f32 v16, v16, v17")
    bf16r(16, 16)
    A("v_mul_f32 v16, v16, v14")
    bf16r(16, 16)
    A("v_add_f32 v16, v16, v15")
    A("v_cvt_pk_bf16_f32 v16, v16, v16")
    A("v_lshlrev_b32 v11, 1, v1")
    A("s_lshl_b32 s31, s59, 7")
    A("buffer_store_short v16, v11, s[40:43], s31 offen")
    stamp(7)
    g.label("L_end")
    stamp_dump()
    g.label("L_end2")
    A("s_endpgm")

    g.o.append('.section .rodata,"a"')
    for name, nv in ((PNAME, 128), (KNAME, 128)):
        g.o.append(".p2align 6")
        g.o.append(f".amdhsa_kernel {name}")
        g.o.append(f"  .amdhsa_next_free_vgpr {nv}")
        g.o.append("  .amdhsa_next_free_sgpr 102")
        g.o.append(f"  .amdhsa_accum_offset {nv}")
        g.o.append("  .amdhsa_group_segment_fixed_size 0")
        g.o.append("  .amdhsa_kernarg_size 96")
        g.o.append("  .amdhsa_user_sgpr_count 2")
        g.o.append("  .amdhsa_user_sgpr_kernarg_segment_ptr 1")
        g.o.append("  .amdhsa_system_sgpr_workgroup_id_x 1")
        g.o.append("  .amdhsa_float_denorm_mode_32 3")
        g.o.append(".end_amdhsa_kernel")
    return g.text()


if __name__ == "__main__":
    import argparse
    ap = argparse.ArgumentParser()
    ap.add_argument("out")
    for k, d in dict(sleep_poll=4, NS=24, rotmul=0, stamps=0).items():
        ap.add_argument("--" + k, type=int, default=d)
    ap.add_argument("--nopool", action="store_true")
    for k in ("wflags", "woflags"):
        ap.add_argument("--" + k, default="nt")
    ap.add_argument("--xflags", default="")
    a = ap.parse_args()
    open(a.out, "w").write(gen(sleep_poll=a.sleep_poll, NS=a.NS, rotmul=a.rotmul, stamps=a.stamps, pool=not a.nopool,
                               wflags=a.wflags, woflags=a.woflags, xflags=a.xflags))
```
